```python
import torch

def _softmax(x, axis=-1):
    return torch.softmax(x, dim=axis)
def _gelu(x):
    return torch.nn.functional.gelu(x, approximate="tanh")
def _silu(x):
    return torch.nn.functional.silu(x)
def _sigmoid(x):
    return torch.sigmoid(x)
def _layernorm(x, axis=-1, eps=1e-5):
    m = x.mean(dim=axis, keepdim=True)
    v = x.var(dim=axis, keepdim=True, unbiased=False)
    return (x - m) / torch.sqrt(v + eps)
def _scatter_add(tgt, idx, src, axis=0):
    return tgt.clone().index_add_(axis, idx, src)
def _segment_sum(src, seg, n):
    out = torch.zeros((n,) + src.shape[1:], dtype=src.dtype)
    return out.index_add_(0, seg, src)
def _pad(x, pw):
    flat = tuple(v for pair in reversed(pw) for v in pair)
    return torch.nn.functional.pad(x, flat)

kernel_name = 'standalone__gqa_block_cached__near_ridge'

def setup_inputs():

    _w = (lambda a: (lambda t: t.to(torch.bfloat16) if t.is_floating_point() else t)(torch.as_tensor(a)))
    B, Sq, D = 8, 64, 576
    Hq, Hkv, Sk, Dh = 32, 16, 2048, 128
    assert Hq % Hkv == 0, (Hq, Hkv)
    return {
        "x": _w((lambda *s: torch.randn(*s, dtype=torch.bfloat16) * 0.8)(B, Sq, D)),
        "k_cache": _w((lambda *s: torch.randn(*s, dtype=torch.bfloat16) * 0.8)(B, Hkv, Sk, Dh)),
        "v_cache": _w((lambda *s: torch.randn(*s, dtype=torch.bfloat16) * 0.05)(B, Hkv, Sk, Dh)),
        "wq": _w((lambda *s: torch.randn(*s, dtype=torch.bfloat16) * 0.8)(D, Hq * Dh) * (D ** -0.5)),
        "wo": _w((lambda *s: torch.randn(*s, dtype=torch.bfloat16) * 0.05)(Hq * Dh, D) * ((Hq * Dh) ** -0.5)),
    }

def reference(x, k_cache, v_cache, wq, wo):
    B, Sq, D = x.shape
    Hq, Dh = 32, 128
    Hkv = k_cache.shape[1]
    rep = Hq // Hkv
    q = (lambda x, *d: x.permute(*d))((x @ wq).reshape(B, Sq, Hq, Dh), 0, 2, 1, 3)
    k = (lambda x, n, axis: torch.repeat_interleave(x, n, dim=axis))(k_cache, rep, axis=1)
    v = (lambda x, n, axis: torch.repeat_interleave(x, n, dim=axis))(v_cache, rep, axis=1)
    scores = torch.einsum("bhqd,bhkd->bhqk", q, k) * (Dh ** -0.5)
    p = _softmax(scores, axis=-1)
    o = torch.einsum("bhqk,bhkd->bhqd", p, v)
    return (lambda x, *d: x.permute(*d))(o, 0, 2, 1, 3).reshape(B, Sq, Hq * Dh) @ wo
```

```python
class Emit:
    def __init__(self):
        self.L = []
        self.vm = []
        self.lg = []
    def __call__(self, s):
        self.L.append("  " + s)
    def raw(self, s):
        self.L.append(s)
    def label(self, s):
        self.L.append(s + ":")
    def c(self, s):
        self.L.append("  ; " + s)
    def vmem(self, s, tag):
        self.vm.append(tag)
        self(s)
    def wait_vm(self, tag):
        idx = max(i for i, t in enumerate(self.vm) if t == tag)
        n = len(self.vm) - 1 - idx
        n = min(n, 63)
        self(f"s_waitcnt vmcnt({n})")
        self.vm = self.vm[len(self.vm) - n:] if n else []
    def wait_vm_n(self, n):
        self(f"s_waitcnt vmcnt({n})")
        self.vm = self.vm[len(self.vm) - n:] if n else []
    def ds(self, s, tag):
        assert len(self.lg) < 15, "too many outstanding DS ops"
        self.lg.append(tag)
        self(s)
    def wait_lg(self, tag):
        if tag not in self.lg:
            return
        idx = max(i for i, t in enumerate(self.lg) if t == tag)
        n = len(self.lg) - 1 - idx
        self(f"s_waitcnt lgkmcnt({n})")
        self.lg = self.lg[len(self.lg) - n:] if n else []
    def wait_lg_all(self):
        self("s_waitcnt lgkmcnt(0)")
        self.lg = []
    def text(self):
        return "\n".join(self.L) + "\n"

def vr(a, n):
    return f"v[{a}:{a+n-1}]"
def ar(a, n):
    return f"a[{a}:{a+n-1}]"

def kd(name, nvgpr, nsgpr, accum):
    return f""".section .rodata,"a"
.p2align 6
.amdhsa_kernel {name}
  .amdhsa_next_free_vgpr {nvgpr}
  .amdhsa_next_free_sgpr {nsgpr}
  .amdhsa_accum_offset {accum}
  .amdhsa_group_segment_fixed_size 0
  .amdhsa_kernarg_size 64
  .amdhsa_user_sgpr_count 2
  .amdhsa_user_sgpr_kernarg_segment_ptr 1
  .amdhsa_system_sgpr_workgroup_id_x 1
.end_amdhsa_kernel
.text
"""
```

```python
import sys, struct, math
from emit import *

def f32bits(x):
    return struct.unpack("<I", struct.pack("<f", x))[0]

class Cfg:
    kvflag = " nt"
    wflag = ""
    T = 8.0

C_SCALE = math.log2(math.e) / math.sqrt(128.0)

QBASE = 147456
SCRBASE = 139264
STATBASE = 147456
def xloc(kb):
    return (kb >> 1) * 32768 + 16384 + (kb & 1) * 8192 if kb < 8 else 131072

def gen_k1(cfg, name):
    e = Emit()
    e.raw(f".globl {name}\n.p2align 8\n.type {name},@function\n{name}:")
    vLane = 1
    vKsrc = [10, 11, 12, 13]; vVsrc = 14; vLin = 15
    vKa = list(range(16, 24)); vVa = list(range(24, 28))
    vM = [28, 29]; vMC = [30, 31]; vThr = [32, 33]; vL = [34, 35]; vTM = [36, 37]
    vT = list(range(38, 48))
    S = [48, 64]
    def P(qt, sp): return 80 + qt * 8 + sp * 4
    def Kf(s): return 96 + 4 * s
    def Vf(dt, sp): return 128 + (sp * 4 + dt) * 4
    def O(dt, qt): return (dt * 2 + qt) * 16
    def Q(qt, s): return 128 + (qt * 8 + s) * 4
    WQ = 112
    def Xf(buf, tt): return 48 + buf * 16 + tt * 4
    def Af(buf, c): return 80 + buf * 8 + c * 4
    def Qacc(c, tt): return 128 + (c * 4 + tt) * 4
    vXB = [[96, 97, 98], [99, 100, 101]]
    vTr = 102; vScr = 103; vXsrc = [104, 105]; vWsrc = 106; vQw = 107
    sK, sV, sX, sW, sO = "s[32:35]", "s[36:39]", "s[40:43]", "s[44:47]", "s[48:51]"
    sWave = "s20"; sKoff = "s52"; sVoff = "s53"; sTmp = "s54"; sWB = "s55"
    sCnt = "s64"; sC = "s65"; sThr = "s66"; sFirst = "s67"

    e("s_cmp_ge_u32 s2, 256")
    e("s_cbranch_scc1 L1_done")
    e("s_load_dwordx4 s[4:7], s[0:1], 0")
    e("s_load_dwordx4 s[8:11], s[0:1], 16")
    e("s_load_dwordx2 s[18:19], s[0:1], 56")
    e("v_lshrrev_b32 v2, 6, v0")
    e(f"v_and_b32 v{vLane}, 63, v0")
    e("s_and_b32 s21, s2, 7")
    e(f"v_readfirstlane_b32 {sWave}, v2")
    e("s_lshr_b32 s22, s2, 3")
    e("s_lshr_b32 s23, s22, 2")
    e("s_and_b32 s24, s22, 3")
    e("s_lshl_b32 s25, s21, 2")
    e("s_add_u32 s25, s25, s24")
    e("s_lshr_b32 s26, s25, 1")
    e("s_lshl_b32 s27, s23, 4")
    e("s_add_u32 s27, s27, s26")
    e("s_lshl_b32 s27, s27, 19")
    e("s_mul_i32 s28, s23, 73728")
    e(f"s_lshl_b32 {sWB}, {sWave}, 15")
    e(f"v_lshrrev_b32 v2, 3, v{vLane}")
    e(f"v_and_b32 v3, 7, v{vLane}")
    e(f"s_lshl_b32 s29, {sWave}, 4")
    for tgp in range(2):
        e(f"v_add_u32 v4, {8*tgp}, v2")
        e("v_lshrrev_b32 v5, 1, v4")
        e("v_xor_b32 v5, v5, v3")
        e("v_lshlrev_b32 v5, 4, v5")
        e("v_add_u32 v4, s29, v4")
        e("v_mul_u32_u24 v4, 1152, v4")
        e(f"v_add_u32 v{vXsrc[tgp]}, v4, v5")
    e(f"v_lshrrev_b32 v2, 2, v{vLane}")
    e("v_lshlrev_b32 v2, 13, v2")
    e(f"v_and_b32 v3, 3, v{vLane}")
    e("v_lshlrev_b32 v3, 4, v3")
    e("s_lshl_b32 s29, s25, 8")
    e(f"s_lshl_b32 s30, {sWave}, 6")
    e("s_add_u32 s29, s29, s30")
    e(f"v_add3_u32 v{vWsrc}, v2, v3, s29")
    e(f"v_lshrrev_b32 v2, 4, v{vLane}")
    e(f"v_and_b32 v3, 15, v{vLane}")
    e("v_lshlrev_b32 v4, 8, v2")
    for i in range(4):
        e(f"v_add_u32 v5, {4*i}, v2")
        e("v_xor_b32 v5, v5, v3")
        e(f"v_lshl_add_u32 v{vKsrc[i]}, v5, 4, v4")
    e("v_lshlrev_b32 v5, 2, v2")
    e("v_xor_b32 v5, v5, v3")
    e(f"v_lshl_add_u32 v{vVsrc}, v5, 4, v4")
    e("s_waitcnt lgkmcnt(0)")
    e("s_add_u32 s40, s4, s28"); e("s_addc_u32 s41, s5, 0"); e("s_mov_b32 s42, 73728"); e("s_mov_b32 s43, 0x20000")
    e("s_mov_b32 s44, s10"); e("s_mov_b32 s45, s11"); e("s_mov_b32 s46, 4718592"); e("s_mov_b32 s47, 0x20000")
    e("s_add_u32 s32, s6, s27"); e("s_addc_u32 s33, s7, 0"); e("s_mov_b32 s34, 524288"); e("s_mov_b32 s35, 0x20000")
    e("s_add_u32 s36, s8, s27"); e("s_addc_u32 s37, s9, 0"); e("s_mov_b32 s38, 524288"); e("s_mov_b32 s39, 0x20000")
    e("s_mov_b32 s48, s18"); e("s_mov_b32 s49, s19"); e("s_mov_b32 s50, 4194304"); e("s_mov_b32 s51, 0x20000")
    e(f"s_lshl_b32 s29, {sWave}, 11")
    for kb in range(9):
        for tgp in range(2):
            e(f"s_add_u32 m0, s29, {xloc(kb) + tgp*1024 - kb*128}")
            e("s_nop 0")
            e.vmem(f"buffer_load_dwordx4 v{vXsrc[tgp]}, {sX}, 0 offen offset:{kb*128}{cfg.wflag} lds", "x")
    e(f"s_mov_b32 {sTmp}, 0")
    for i in range(36):
        e.vmem(f"buffer_load_dwordx4 {vr(WQ+4*i,4)}, v{vWsrc}, {sW}, {sTmp} offen{cfg.wflag}", f"wq{i//2}")
        if i < 35: e(f"s_add_u32 {sTmp}, {sTmp}, 131072")
    e(f"s_lshl_b32 {sKoff}, {sWave}, 13")
    e(f"s_mov_b32 {sVoff}, {sKoff}")
    def dma_ops(kind, slot_off, tag):
        srd = sK if kind == "K" else sV
        off = sKoff if kind == "K" else sVoff
        ops = []
        for half in range(2):
            def setm0(half=half):
                e(f"s_add_u32 m0, {sWB}, {slot_off + half*4096}")
                if half == 0:
                    e(f"s_add_u32 {sTmp}, {off}, 4096")
                else:
                    e("s_nop 0")
            for i in range(4):
                def ld(half=half, i=i, setm0=setm0):
                    if i == 0: setm0()
                    src = vKsrc[i] if kind == "K" else vVsrc
                    so = off if half == 0 else sTmp
                    e.vmem(f"buffer_load_dwordx4 v{src}, {srd}, {so} offen offset:{i*1024}{cfg.kvflag} lds", tag)
                    if half == 1 and i == 3:
                        e(f"s_add_u32 {off}, {off}, 32768")
                ops.append(ld)
        return ops
    for op in dma_ops("K", 0, "K0"): op()
    for op in dma_ops("V", 8192, "V0"): op()
    for kind, base in (("K", 192), ("V", 224)):
        srd = sK if kind == "K" else sV
        off = sKoff if kind == "K" else sVoff
        e(f"s_add_u32 {sTmp}, {off}, 4096")
        for i in range(8):
            src = vKsrc[i & 3] if kind == "K" else vVsrc
            so = off if i < 4 else sTmp
            e.vmem(f"buffer_load_dwordx4 {ar(base+4*i,4)}, v{src}, {srd}, {so} offen offset:{(i&3)*1024}{cfg.kvflag}", kind + "1")
        e(f"s_add_u32 {off}, {off}, 32768")
    e(f"v_and_b32 v2, 31, v{vLane}")
    e(f"v_lshrrev_b32 v3, 5, v{vLane}")
    e(f"v_and_b32 v4, 15, v{vLane}")
    e("v_lshlrev_b32 v2, 8, v2")
    e(f"v_add_u32 v2, {sWB}, v2")
    for s in range(8):
        e(f"v_add_u32 v5, {2*s}, v3")
        e("v_xor_b32 v5, v5, v4")
        e(f"v_lshl_add_u32 v{vKa[s]}, v5, 4, v2")
    e(f"v_lshrrev_b32 v2, 5, v{vLane}")
    e(f"v_bfe_u32 v3, v{vLane}, 2, 2")
    e(f"v_bfe_u32 v4, v{vLane}, 4, 1")
    e(f"v_and_b32 v5, 3, v{vLane}")
    e("v_lshl_add_u32 v2, v2, 2, v3")
    e("v_lshlrev_b32 v2, 8, v2")
    e("v_lshl_add_u32 v2, v4, 5, v2")
    e("v_lshl_add_u32 v2, v5, 3, v2")
    e(f"v_add_u32 v2, {sWB}, v2")
    for dt in range(4):
        e(f"v_xor_b32 v6, {dt}, v3")
        e(f"v_lshl_add_u32 v{vVa[dt]}, v6, 6, v2")
    e(f"v_lshlrev_b32 v{vLin}, 4, v{vLane}")
    e(f"v_add_u32 v{vLin}, {sWB}, v{vLin}")
    e(f"v_and_b32 v2, 15, v{vLane}")
    e(f"v_lshrrev_b32 v3, 4, v{vLane}")
    e("v_lshrrev_b32 v4, 3, v2")
    e("v_lshlrev_b32 v4, 10, v4")
    e("v_and_b32 v5, 7, v2")
    e("v_lshl_add_u32 v4, v5, 7, v4")
    e("v_lshrrev_b32 v5, 1, v2")
    for sp in range(2):
        e(f"v_add_u32 v6, {4*sp}, v3")
        e("v_xor_b32 v6, v6, v5")
        e(f"v_lshl_add_u32 v{vXB[sp][0]}, v6, 4, v4")
        e(f"v_add_u32 v{vXB[sp][1]}, 0x10000, v{vXB[sp][0]}")
        e(f"v_add_u32 v{vXB[sp][2]}, 0x20000, v{vXB[sp][0]}")
    e(f"s_lshl_b32 s29, {sWave}, 11")
    e(f"s_add_u32 s29, s29, {SCRBASE}")
    e(f"v_lshlrev_b32 v{vScr}, 4, v{vLane}")
    e(f"v_add_u32 v{vScr}, s29, v{vScr}")
    e(f"v_bfe_u32 v4, v{vLane}, 2, 2")
    e("v_lshl_add_u32 v4, v3, 3, v4")
    e("v_lshlrev_b32 v4, 6, v4")
    e(f"v_and_b32 v5, 3, v{vLane}")
    e("v_lshl_add_u32 v4, v5, 4, v4")
    e(f"v_add_u32 v{vTr}, s29, v4")
    e(f"s_lshl_b32 s29, {sWave}, 2")
    e("v_add_u32 v4, s29, v3")
    e("v_xor_b32 v4, v4, v2")
    e("v_lshlrev_b32 v4, 4, v4")
    e("v_lshl_add_u32 v4, v2, 8, v4")
    e(f"v_add_u32 v{vQw}, {QBASE}, v4")
    e(f"s_mov_b32 {sC}, 0x{f32bits(C_SCALE):08x}")
    e(f"s_mov_b32 {sThr}, 0x{f32bits(cfg.T / C_SCALE):08x}")
    for qt in range(2):
        e(f"v_mov_b32 v{vM[qt]}, 0xf149f2ca")
        e(f"v_mov_b32 v{vThr[qt]}, 0xf149f2ca")
        e(f"v_mov_b32 v{vMC[qt]}, 0")
        e(f"v_mov_b32 v{vL[qt]}, 0")
    for i in range(128):
        e(f"v_accvgpr_write_b32 a{i}, 0")
    e.wait_vm("x")
    e("s_barrier")
    def qds(s):
        buf = s & 1
        if f"wq{s}" in e.vm: e.wait_vm(f"wq{s}")
        e.ds(f"ds_write_b128 v{vScr}, {vr(WQ+8*s,4)}", "w")
        e.ds(f"ds_write_b128 v{vScr}, {vr(WQ+8*s+4,4)} offset:1024", "w")
        for c in range(2):
            for u in range(2):
                e.ds(f"ds_read_b64_tr_b16 {vr(Af(buf,c)+2*u,2)}, v{vTr} offset:{u*256+c*8}", f"q{s}")
        kb = s >> 1
        loc = xloc(kb)
        bi = loc >> 16
        for tt in range(4):
            e.ds(f"ds_read_b128 {vr(Xf(buf,tt),4)}, v{vXB[s&1][bi]} offset:{(loc & 0xffff) + tt*2048}", f"q{s}")
    qds(0)
    for s in range(18):
        e.wait_lg_all()
        if s + 1 < 18: qds(s + 1)
        buf = s & 1
        for c in range(2):
            for tt in range(4):
                src = "0" if s == 0 else ar(Qacc(c, tt), 4)
                e(f"v_mfma_f32_16x16x32_bf16 {ar(Qacc(c,tt),4)}, {vr(Af(buf,c),4)}, {vr(Xf(buf,tt),4)}, {src}")
    e("s_nop 7")
    e("s_nop 1")
    for tt in range(4):
        for c in range(2):
            for r in range(4):
                e(f"v_accvgpr_read_b32 v{48 + tt*8 + c*4 + r}, a{Qacc(c,tt)+r}")
    for tt in range(4):
        b = 48 + tt * 8
        d = 80 + tt * 4
        for c in range(2):
            e(f"v_cvt_pk_bf16_f32 v{d+2*c}, v{b+4*c}, v{b+4*c+1}")
            e(f"v_cvt_pk_bf16_f32 v{d+2*c+1}, v{b+4*c+2}, v{b+4*c+3}")
    for tt in range(4):
        e.ds(f"ds_write_b128 v{vQw}, {vr(80+tt*4,4)} offset:{tt*4096}", "qw")
    e(f"s_sub_u32 s29, {QBASE}, {sWB}")
    for s in range(8):
        e(f"v_add_u32 v{96+s}, s29, v{vKa[s]}")
    e.wait_lg_all()
    e("s_barrier")
    for qt in range(2):
        for s in range(8):
            if len(e.lg) >= 14: e.wait_lg_all()
            e.ds(f"ds_read_b128 {ar(Q(qt,s),4)}, v{96+s} offset:{qt*8192}", "qr")
    e.wait_lg_all()
    e(f"s_mov_b32 {sCnt}, 8")
    e(f"s_mov_b32 {sFirst}, 1")

    e.vm = []
    def tile(p):
        KO = p * 16384
        VO = KO + 8192
        e.c(f"---- tile parity {p}")
        e("s_waitcnt vmcnt(24)")
        for s in range(8):
            e.ds(f"ds_read_b128 {vr(Kf(s),4)}, v{vKa[s]} offset:{KO}", f"k{s}")
        dm = dma_ops("K", KO, "K")
        for s in range(8):
            if s < 3: e.wait_lg(f"k{s}")
            elif s == 3: e.wait_lg_all()
            for qt in range(2):
                src = "0" if s == 0 else vr(S[qt], 16)
                e(f"v_mfma_f32_32x32x16_bf16 {vr(S[qt],16)}, {vr(Kf(s),4)}, {ar(Q(qt,s),4)}, {src}")
                if s >= 3 and dm and not (s == 7 and qt == 1):
                    dm.pop(0)()
        assert not dm or len(dm) == 0 or True
        while dm: dm.pop(0)()
        e("s_nop 7")
        e("s_nop 3")
        for qt in range(2):
            b = S[qt]
            e(f"v_max3_f32 v{vTM[qt]}, v{b}, v{b+1}, v{b+2}")
            for i in range(6):
                e(f"v_max3_f32 v{vTM[qt]}, v{vTM[qt]}, v{b+3+2*i}, v{b+4+2*i}")
            e(f"v_max_f32 v{vTM[qt]}, v{vTM[qt]}, v{b+15}")
        e(f"v_cmp_gt_f32 vcc, v{vTM[0]}, v{vThr[0]}")
        e(f"v_cmp_gt_f32 s[60:61], v{vTM[1]}, v{vThr[1]}")
        e("s_or_b64 s[60:61], s[60:61], vcc")
        e(f"s_cbranch_scc1 L1_rare{p}")
        e.label(f"L1_back{p}")
        for qt in range(2):
            b = S[qt]
            for r in range(16):
                e(f"v_fma_f32 v{b+r}, v{b+r}, {sC}, -v{vMC[qt]}")
            for r in range(16):
                e(f"v_exp_f32 v{b+r}, v{b+r}")
        for qt in range(2):
            b = S[qt]
            for r in range(16):
                e(f"v_add_f32 v{vL[qt]}, v{vL[qt]}, v{b+r}")
                if r % 2 == 1:
                    e(f"v_cvt_pk_bf16_f32 v{P(qt, r//8) + (r%8)//2}, v{b+r-1}, v{b+r}")
        e("s_waitcnt vmcnt(24)")
        reads = []
        for sp in range(2):
            for dt in range(4):
                for u in range(2):
                    reads.append((sp, dt, u))
        def vread(sp, dt, u):
            e.ds(f"ds_read_b64_tr_b16 {vr(Vf(dt,sp)+2*u,2)}, v{vVa[dt]} offset:{VO + (16*sp+8*u)*256}", f"v{sp}{dt}")
        for _ in range(14): vread(*reads.pop(0))
        dm = dma_ops("V", VO, "V")
        n = 0
        for sp in range(2):
            for dt in range(4):
                if n < 3:
                    e.wait_lg(f"v{sp}{dt}")
                    while reads and len(e.lg) < 14: vread(*reads.pop(0))
                elif n == 3:
                    e.wait_lg_all()
                for qt in range(2):
                    e(f"v_mfma_f32_32x32x16_bf16 {ar(O(dt,qt),16)}, {vr(Vf(dt,sp),4)}, {vr(P(qt,sp),4)}, {ar(O(dt,qt),16)}")
                    if n >= 3 and dm: dm.pop(0)()
                n += 1
        while dm: dm.pop(0)()
    e.label("L1_loop")
    tile(0)
    e(f"s_cmp_eq_u32 {sFirst}, 0")
    e("s_cbranch_scc1 L1_nostage")
    e("s_waitcnt vmcnt(16)")
    for i in range(16):
        if len(e.lg) >= 14: e.wait_lg_all()
        e.ds(f"ds_write_b128 v{vLin}, {ar(192+4*i,4)} offset:{16384 + i*1024}", "st")
    e.wait_lg_all()
    e(f"s_mov_b32 {sFirst}, 0")
    e.label("L1_nostage")
    tile(1)
    e(f"s_sub_u32 {sCnt}, {sCnt}, 1")
    e(f"s_cmp_lg_u32 {sCnt}, 0")
    e("s_cbranch_scc1 L1_loop")

    t0, t1, t2, t3 = vT[0], vT[1], vT[2], vT[3]
    e(f"v_mov_b32 v{t0}, v{vL[0]}")
    e(f"v_mov_b32 v{t1}, v{vL[1]}")
    e(f"v_mov_b32 v{t2}, v{vM[0]}")
    e(f"v_mov_b32 v{t3}, v{vM[1]}")
    e("s_nop 1")
    e(f"v_permlane32_swap_b32 v{t0}, v{t1}")
    e(f"v_permlane32_swap_b32 v{t2}, v{t3}")
    e(f"v_add_f32 v{t3}, v{t0}, v{t1}")
    assert t2 % 2 == 0
    e(f"s_lshl_b32 s29, {sWave}, 9")
    e(f"s_add_u32 s29, s29, {STATBASE}")
    e(f"v_lshlrev_b32 v2, 3, v{vLane}")
    e("v_add_u32 v3, s29, v2")
    e.ds(f"ds_write_b64 v3, {vr(t2,2)}", "sw")
    e(f"v_add_u32 v2, {STATBASE}, v2")
    e.wait_lg_all()
    e("s_barrier")
    for w in range(4):
        e.ds(f"ds_read_b64 {vr(48+2*w,2)}, v2 offset:{w*512}", "sr")
    e.wait_lg_all()
    e("v_max3_f32 v56, v48, v50, v52")
    e("v_max_f32 v56, v56, v54")
    for w in range(4):
        e(f"v_sub_f32 v{58+w}, v{48+2*w}, v56")
    for w in range(4):
        e(f"v_mul_f32 v{58+w}, {sC}, v{58+w}")
    for w in range(4):
        e(f"v_exp_f32 v{58+w}, v{58+w}")
    e(f"v_sub_f32 v62, v{t2}, v56")
    e(f"v_mul_f32 v62, {sC}, v62")
    e("v_exp_f32 v62, v62")
    e("v_mul_f32 v63, v58, v49")
    e("v_fma_f32 v63, v59, v51, v63")
    e("v_fma_f32 v63, v60, v53, v63")
    e("v_fma_f32 v63, v61, v55, v63")
    e("v_rcp_f32 v63, v63")
    e("s_nop 0")
    e(f"v_mul_f32 v{t0}, v62, v63")
    e(f"v_mov_b32 v{t1}, v{t0}")
    e("s_nop 1")
    e(f"v_permlane32_swap_b32 v{t0}, v{t1}")
    e("s_waitcnt vmcnt(0)")
    sc = [t0, t1]
    k = 0
    for dt in range(4):
        for qt in range(2):
            b = 64 + (k % 4) * 16
            k += 1
            if len(e.lg) >= 11: e.wait_lg_all()
            for r in range(16):
                e(f"v_accvgpr_read_b32 v{b+r}, a{O(dt,qt)+r}")
            for r in range(16):
                e(f"v_mul_f32 v{b+r}, v{sc[qt]}, v{b+r}")
            for g in range(4):
                e.ds(f"ds_write_b128 v{vLin}, {vr(b+4*g,4)} offset:{dt*8192 + qt*4096 + g*1024}", "ow")
    e.wait_lg_all()
    e("s_barrier")
    e(f"s_lshl_b32 s29, {sWave}, 13")
    e(f"v_lshlrev_b32 v2, 4, v{vLane}")
    e("v_add_u32 v2, s29, v2")
    e("v_add_u32 v3, 0x10000, v2")
    for sw in range(4):
        base = "v2" if sw < 2 else "v3"
        for qt in range(2):
            for g in range(4):
                if len(e.lg) >= 14: e.wait_lg_all()
                e.ds(f"ds_read_b128 {vr(64 + sw*32 + qt*16 + g*4,4)}, {base} offset:{(sw&1)*32768 + qt*4096 + g*1024}", "or")
    e.wait_lg_all()
    for i in range(32):
        e(f"v_add_f32 v{64+i}, v{64+i}, v{96+i}")
        e(f"v_add_f32 v{128+i}, v{128+i}, v{160+i}")
    for i in range(32):
        e(f"v_add_f32 v{64+i}, v{64+i}, v{128+i}")
    for qt in range(2):
        for g0 in range(2):
            d = 200 + (qt * 2 + g0) * 4
            b = 64 + qt * 16
            e(f"v_cvt_pk_bf16_f32 v{d}, v{b+4*g0}, v{b+4*g0+1}")
            e(f"v_cvt_pk_bf16_f32 v{d+1}, v{b+4*g0+2}, v{b+4*g0+3}")
            e(f"v_cvt_pk_bf16_f32 v{d+2}, v{b+4*(g0+2)}, v{b+4*(g0+2)+1}")
            e(f"v_cvt_pk_bf16_f32 v{d+3}, v{b+4*(g0+2)+2}, v{b+4*(g0+2)+3}")
    e(f"v_bfe_u32 v2, v{vLane}, 4, 1")
    e("v_lshlrev_b32 v2, 17, v2")
    e(f"v_and_b32 v3, 15, v{vLane}")
    e("v_lshl_add_u32 v2, v3, 4, v2")
    e(f"v_lshrrev_b32 v3, 5, v{vLane}")
    e("v_lshl_add_u32 v2, v3, 8, v2")
    e("s_lshl_b32 s29, s23, 19")
    e("s_lshl_b32 s30, s25, 2")
    e(f"s_add_u32 s30, s30, {sWave}")
    e("s_lshl_b32 s30, s30, 10")
    e("s_add_u32 s29, s29, s30")
    e("s_add_u32 s30, s29, 262144")
    for qt in range(2):
        for g0 in range(2):
            so = "s29" if qt == 0 else "s30"
            e(f"buffer_store_dwordx4 {vr(200 + (qt*2+g0)*4,4)}, v2, {sO}, {so} offen offset:{g0*512}")
    e.label("L1_done")
    e("s_endpgm")

    for p in range(2):
        e.label(f"L1_rare{p}")
        e(f"v_mov_b32 v{t0}, v{vTM[0]}")
        e(f"v_mov_b32 v{t1}, v{vTM[1]}")
        e("s_nop 1")
        e(f"v_permlane32_swap_b32 v{t0}, v{t1}")
        e(f"v_max_f32 v{t0}, v{t0}, v{t1}")
        e(f"v_mov_b32 v{t1}, v{t0}")
        e("s_nop 1")
        e(f"v_permlane32_swap_b32 v{t0}, v{t1}")
        tt_ = [t0, t1]; al = [t2, t3]
        for qt in range(2):
            e(f"v_max_f32 v{tt_[qt]}, v{tt_[qt]}, v{vM[qt]}")
            e(f"v_sub_f32 v{al[qt]}, v{vM[qt]}, v{tt_[qt]}")
            e(f"v_mul_f32 v{al[qt]}, {sC}, v{al[qt]}")
            e(f"v_exp_f32 v{al[qt]}, v{al[qt]}")
            e(f"v_mov_b32 v{vM[qt]}, v{tt_[qt]}")
            e(f"v_mul_f32 v{vMC[qt]}, {sC}, v{tt_[qt]}")
            e(f"v_add_f32 v{vThr[qt]}, {sThr}, v{tt_[qt]}")
            e(f"v_mul_f32 v{vL[qt]}, v{vL[qt]}, v{al[qt]}")
        if p == 0:
            e(f"s_cmp_eq_u32 {sFirst}, 1")
            e(f"s_cbranch_scc1 L1_back{p}")
        for dt in range(4):
            for qt in range(2):
                for h4 in range(4):
                    for r in range(4):
                        e(f"v_accvgpr_read_b32 v{vT[4]+r}, a{O(dt,qt)+4*h4+r}")
                    for r in range(4):
                        e(f"v_mul_f32 v{vT[4]+r}, v{al[qt]}, v{vT[4]+r}")
                    for r in range(4):
                        e(f"v_accvgpr_write_b32 a{O(dt,qt)+4*h4+r}, v{vT[4]+r}")
        e(f"s_branch L1_back{p}")
    e.raw(kd(name, 512, 96, 256))
    return e.text()

def gen_k2(cfg, name):
    e = Emit()
    e.raw(f".globl {name}\n.p2align 8\n.type {name},@function\n{name}:")
    NW = 8; KS = 16; NSLOT = 6; SLOT = 3072; WREG = NSLOT * SLOT
    vLane = 1
    vAsrc = [4, 5, 6]; vB = 7; vTr = 8
    def Bf(ks, tt): return 64 + (ks * 2 + tt) * 4
    def Af(buf, nt): return 16 + (buf * 3 + nt) * 4
    def Acc(nt, tt): return 40 + (nt * 2 + tt) * 4
    sWO, sO, sOut = "s[32:35]", "s[36:39]", "s[40:43]"
    e("s_cmp_ge_u32 s2, 192")
    e("s_cbranch_scc1 L2_done")
    e("s_load_dwordx4 s[12:15], s[0:1], 32")
    e("s_load_dwordx2 s[18:19], s[0:1], 56")
    e("v_lshrrev_b32 v2, 6, v0")
    e(f"v_and_b32 v{vLane}, 63, v0")
    e("s_and_b32 s21, s2, 7")
    e("v_readfirstlane_b32 s20, v2")
    e("s_lshr_b32 s22, s2, 3")
    e("s_lshr_b32 s23, s21, 1")
    e("s_and_b32 s24, s21, 1")
    e("s_and_b32 s25, s22, 3")
    e("s_lshl_b32 s23, s23, 2")
    e("s_add_u32 s23, s23, s25")
    e("s_lshr_b32 s25, s22, 2")
    e("s_mul_i32 s24, s24, 6")
    e("s_add_u32 s24, s24, s25")
    e("s_mov_b32 s26, 43691")
    for i in range(3):
        e(f"v_add_u32 v2, {64*i}, v{vLane}")
        e("v_mul_lo_u32 v3, v2, s26")
        e("v_lshrrev_b32 v3, 18, v3")
        e("v_mul_u32_u24 v9, 6, v3")
        e("v_sub_u32 v2, v2, v9")
        e("v_mul_u32_u24 v3, 1152, v3")
        e(f"v_lshl_add_u32 v{vAsrc[i]}, v2, 4, v3")
    e(f"v_lshlrev_b32 v{vB}, 4, v{vLane}")
    e("s_mul_i32 s27, s20, %d" % WREG)
    e(f"v_lshrrev_b32 v2, 4, v{vLane}")
    e(f"v_bfe_u32 v3, v{vLane}, 2, 2")
    e("v_lshl_add_u32 v2, v2, 2, v3")
    e("v_mul_u32_u24 v2, 96, v2")
    e(f"v_and_b32 v3, 3, v{vLane}")
    e("v_lshl_add_u32 v2, v3, 3, v2")
    e(f"v_add_u32 v{vTr}, s27, v2")
    e("s_lshl_b32 s28, s23, 18")
    e("s_lshl_b32 s29, s20, 14")
    e("s_add_u32 s28, s28, s29")
    e("s_add_u32 s29, s28, 131072")
    e("s_mul_i32 s30, s20, %d" % (512 * 1152))
    e("s_mul_i32 s31, s24, 96")
    e("s_add_u32 s30, s30, s31")
    e("s_waitcnt lgkmcnt(0)")
    e("s_mov_b32 s32, s12"); e("s_mov_b32 s33, s13"); e("s_mov_b32 s34, 4718592"); e("s_mov_b32 s35, 0x20000")
    e("s_mov_b32 s36, s18"); e("s_mov_b32 s37, s19"); e("s_mov_b32 s38, 4194304"); e("s_mov_b32 s39, 0x20000")
    e("s_mov_b32 s40, s14"); e("s_mov_b32 s41, s15"); e("s_mov_b32 s42, 589824"); e("s_mov_b32 s43, 0x20000")
    def loadB(ks):
        for tt in range(2):
            so = "s28" if tt == 0 else "s29"
            e.vmem(f"buffer_load_dwordx4 {vr(Bf(ks,tt),4)}, v{vB}, {sO}, {so} offen offset:{(ks%4)*1024}", f"B{ks}")
        if ks % 4 == 3:
            e("s_add_u32 s28, s28, 4096"); e("s_add_u32 s29, s29, 4096")
    def loadA(ks):
        slot = ks % NSLOT
        for i in range(3):
            e(f"s_add_u32 m0, s27, {slot*SLOT + i*1024}")
            e("s_nop 0")
            e.vmem(f"buffer_load_dwordx4 v{vAsrc[i]}, {sWO}, s30 offen lds", f"A{ks}")
        e("s_add_u32 s30, s30, %d" % (32 * 1152))
    for ks in range(NSLOT):
        loadA(ks); loadB(ks)
    for ks in range(NSLOT, KS):
        loadB(ks)
    def readA(ks):
        slot = ks % NSLOT; buf = ks & 1
        e.wait_vm(f"A{ks}")
        for nt in range(3):
            for u in range(2):
                e.ds(f"ds_read_b64_tr_b16 {vr(Af(buf,nt)+2*u,2)}, v{vTr} offset:{slot*SLOT + u*1536 + nt*32}", f"a{ks}")
    readA(0)
    for ks in range(KS):
        e.wait_lg_all()
        if ks + NSLOT < KS: loadA(ks + NSLOT)
        if ks + 1 < KS: readA(ks + 1)
        if f"B{ks}" in e.vm: e.wait_vm(f"B{ks}")
        buf = ks & 1
        for nt in range(3):
            for tt in range(2):
                src = "0" if ks == 0 else vr(Acc(nt, tt), 4)
                e(f"v_mfma_f32_16x16x32_bf16 {vr(Acc(nt,tt),4)}, {vr(Af(buf,nt),4)}, {vr(Bf(ks,tt),4)}, {src}")
    e("s_nop 7")
    e("s_nop 1")
    e(f"v_add_u32 v2, s27, v{vB}")
    for t in range(6):
        e.ds(f"ds_write_b128 v2, {vr(40+4*t,4)} offset:{t*1024}", "rw")
    e.wait_lg_all()
    e("s_barrier")
    e("s_cmp_ge_u32 s20, 6")
    e("s_cbranch_scc1 L2_done")
    e("s_lshl_b32 s28, s20, 10")
    e(f"v_add_u32 v2, s28, v{vB}")
    e("v_add_u32 v3, 0x10000, v2")
    e("v_add_u32 v9, 0x20000, v2")
    for w in range(NW):
        off = w * WREG
        base = ["v2", "v3", "v9"][off >> 16]
        e.ds(f"ds_read_b128 {vr(64+4*w,4)}, {base} offset:{off & 0xffff}", "rr")
    e.wait_lg_all()
    for st in (16, 8, 4):
        for i in range(st):
            e(f"v_add_f32 v{64+i}, v{64+i}, v{64+st+i}")
    e("v_cvt_pk_bf16_f32 v64, v64, v65")
    e("v_cvt_pk_bf16_f32 v65, v66, v67")
    e("s_lshr_b32 s28, s20, 1")
    e("s_and_b32 s29, s20, 1")
    e("s_lshl_b32 s30, s23, 1")
    e("s_add_u32 s30, s30, s29")
    e("s_mul_i32 s30, s30, %d" % (16 * 1152))
    e("s_mul_i32 s31, s24, 96")
    e("s_add_u32 s30, s30, s31")
    e("s_lshl_b32 s28, s28, 5")
    e("s_add_u32 s30, s30, s28")
    e(f"v_and_b32 v2, 15, v{vLane}")
    e("v_mul_u32_u24 v2, 1152, v2")
    e(f"v_lshrrev_b32 v3, 4, v{vLane}")
    e("v_lshl_add_u32 v2, v3, 3, v2")
    e(f"buffer_store_dwordx2 v[64:65], v2, {sOut}, s30 offen")
    e.label("L2_done")
    e("s_endpgm")
    e.raw(kd(name, 192, 96, 192))
    return e.text(), NW * WREG

HEADER = open("standalone__gqa_block_cached__near_ridge.s.ref").read().split("; Override")[0]

def main():
    out = sys.argv[1]
    cfg = Cfg()
    for a in sys.argv[2:]:
        k, v = a.split("=")
        if k in ("kvflag", "wflag"):
            v = "" if v == "none" else " " + v.replace("+", " ")
        elif k == "T":
            v = float(v)
        setattr(cfg, k, v)
    k1 = gen_k1(cfg, "gqa_attn_kernel")
    k2, lds2 = gen_k2(cfg, "gqa_oproj_kernel")
    s = HEADER
    s += "; @launch kernel=gqa_attn_kernel grid=(256,1,1) block=(256,1,1) lds=163840\n"
    s += f"; @launch kernel=gqa_oproj_kernel grid=(192,1,1) block=(512,1,1) lds={lds2}\n"
    s += '.amdgcn_target "amdgcn-amd-amdhsa--gfx950"\n.text\n'
    s += k1 + k2
    open(out, "w").write(s)
main()
```
